```python
import torch

def _softmax(x, axis=-1):
    return torch.softmax(x, dim=axis)
def _gelu(x):
    return torch.nn.functional.gelu(x, approximate="tanh")
def _silu(x):
    return torch.nn.functional.silu(x)
def _sigmoid(x):
    return torch.sigmoid(x)
def _layernorm(x, axis=-1, eps=1e-5):
    m = x.mean(dim=axis, keepdim=True)
    v = x.var(dim=axis, keepdim=True, unbiased=False)
    return (x - m) / torch.sqrt(v + eps)
def _scatter_add(tgt, idx, src, axis=0):
    return tgt.clone().index_add_(axis, idx, src)
def _segment_sum(src, seg, n):
    out = torch.zeros((n,) + src.shape[1:], dtype=src.dtype)
    return out.index_add_(0, seg, src)
def _pad(x, pw):
    flat = tuple(v for pair in reversed(pw) for v in pair)
    return torch.nn.functional.pad(x, flat)

kernel_name = 'recurrent_scan__gqa_block_cached__swiglu_ffn__decode'

def setup_inputs():

    _w = (lambda a: (lambda t: t.to(torch.bfloat16) if t.is_floating_point() else t)(torch.as_tensor(a)))
    def _A_setup():
        B, Sq, D = 8, 1, 448
        Hq, Hkv, Sk, Dh = 16, 8, 4096, 256
        assert Hq % Hkv == 0, (Hq, Hkv)
        return {
            "x": _w((lambda *s: torch.randn(*s, dtype=torch.bfloat16) * 0.05)(B, Sq, D)),
            "k_cache": _w((lambda *s: torch.randn(*s, dtype=torch.bfloat16) * 1.6)(B, Hkv, Sk, Dh)),
            "v_cache": _w((lambda *s: torch.randn(*s, dtype=torch.bfloat16) * 0.2)(B, Hkv, Sk, Dh)),
            "wq": _w((lambda *s: torch.randn(*s, dtype=torch.bfloat16) * 1.6)(D, Hq * Dh) * (D ** -0.5)),
            "wo": _w((lambda *s: torch.randn(*s, dtype=torch.bfloat16) * 0.2)(Hq * Dh, D) * ((Hq * Dh) ** -0.5)),
        }
    _A_in = _A_setup()

    def _B_setup():
        B, S, D, F = 8, 1, 448, 1792
        return {
            "x": _w((lambda *s: torch.randn(*s, dtype=torch.bfloat16) * 0.05)(B, S, D)),
            "w_gate": _w((lambda *s: torch.randn(*s, dtype=torch.bfloat16) * 0.1)(D, F)),
            "w_up": _w((lambda *s: torch.randn(*s, dtype=torch.bfloat16) * 0.1)(D, F)),
            "w_down": _w((lambda *s: torch.randn(*s, dtype=torch.bfloat16) * 0.1)(F, D)),
        }
    _B_in = _B_setup()

    return {
        "A_x": _A_in["x"],
        "A_k_cache": _A_in["k_cache"],
        "A_v_cache": _A_in["v_cache"],
        "A_wq": _A_in["wq"],
        "A_wo": _A_in["wo"],
        "B_x": _B_in["x"],
        "B_w_gate": _B_in["w_gate"],
        "B_w_up": _B_in["w_up"],
        "B_w_down": _B_in["w_down"],
    }

def reference(A_x, A_k_cache, A_v_cache, A_wq, A_wo, B_x, B_w_gate, B_w_up, B_w_down):
    def _A_ref(x, k_cache, v_cache, wq, wo):
        B, Sq, D = x.shape
        Hq, Dh = 16, 256
        Hkv = k_cache.shape[1]
        rep = Hq // Hkv
        q = (lambda x, *d: x.permute(*d))((x @ wq).reshape(B, Sq, Hq, Dh), 0, 2, 1, 3)
        k = (lambda x, n, axis: torch.repeat_interleave(x, n, dim=axis))(k_cache, rep, axis=1)
        v = (lambda x, n, axis: torch.repeat_interleave(x, n, dim=axis))(v_cache, rep, axis=1)
        scores = torch.einsum("bhqd,bhkd->bhqk", q, k) * (Dh ** -0.5)
        p = _softmax(scores, axis=-1)
        o = torch.einsum("bhqk,bhkd->bhqd", p, v)
        return (lambda x, *d: x.permute(*d))(o, 0, 2, 1, 3).reshape(B, Sq, Hq * Dh) @ wo

    def _B_ref(x, w_gate, w_up, w_down):
        g = _silu(x @ w_gate)
        u = x @ w_up
        return (g * u) @ w_down

    x = A_x
    xn = _layernorm(x, axis=-1)
    s = _A_ref(xn, A_k_cache, A_v_cache, A_wq, A_wo)
    g = _silu(_B_ref(xn, B_w_gate, B_w_up, B_w_down))
    return x + s * g
```

```python
import sys, math
NAME="recurrent_scan__gqa_block_cached__swiglu_ffn__decode"

class Cfg:
    stamps=False
    npre=(2,2,2,2)
    spin=200000
    kpol="nt"
    wpol=""
    sleep=1

WS_EPOCH=0
WS_Q=0x1000
WS_O=0x40000
WS_S=0x200000
WS_Y=0x300000
WS_ST=0x500000
WS_SIZE=0x800000
RING=32768; SLOT=8192
L_XN=0x20000
L_QL=0x21C00
L_S0=0x22000
L_OC=0x22000
L_ML=0x25800
L_OB=0x25840
L_GL=0x25940
LDS_SIZE=0x26000
MASK=0xFFFFFC00
CEXP=0.0625*math.log2(math.e)

import struct
def f2u(x): return struct.unpack("<I",struct.pack("<f",x))[0]

class Asm:
    def __init__(s): s.L=[]; s.lab=0
    def __call__(s,t):
        for ln in t.strip("\n").split("\n"):
            s.L.append(ln if ln.rstrip().endswith(":") else "  "+ln.strip())
    def label(s,p):
        s.lab+=1; return f"L_{p}_{s.lab}"
    def text(s): return "\n".join(s.L)+"\n"

def gen(cfg):
    a=Asm()
    sW="s3"; sHKV="s26"; sS="s27"; sB="s10"; sR="s11"
    K="s[28:31]"; V="s[32:35]"; WS="s[36:39]"; WA="s[40:43]"; WB="s[44:47]"; WC="s[48:51]"; X="s[52:55]"; WO="s[56:59]"; OUT="s[60:63]"
    sT="s64"; sE="s65"; sMASK="s66"; sKoff="s70"; sVoff="s71"; sRING="s72"; sWoff="s73"; sJF="s74"; sBH="s75"
    nst=[0]
    def stamp():
        if cfg.stamps:
            i=nst[0]; nst[0]+=1
            assert i<12
            a(f"s_memrealtime s[{76+2*i}:{77+2*i}]")
    def streg(i): return 76+2*i if i<10 else 4+2*(i-10)
    def stamp_at(i):
        if cfg.stamps: a(f"s_memrealtime s[{streg(i)}:{streg(i)+1}]")

    a(f"""
s_cmp_ge_u32 s2, 256
s_cbranch_scc1 L_done
""")
    stamp_at(0)
    a(f"""
s_load_dwordx4 s[4:7], s[0:1], 0
s_load_dwordx2 s[8:9], s[0:1], 16
s_load_dwordx4 s[12:15], s[0:1], 24
s_load_dwordx4 s[16:19], s[0:1], 48
s_load_dwordx4 s[20:23], s[0:1], 64
s_load_dwordx2 s[24:25], s[0:1], 88
v_and_b32 v1, 63, v0
v_lshrrev_b32 v37, 6, v0
s_and_b32 {sHKV}, s2, 7
s_lshr_b32 {sR}, s2, 3
v_readfirstlane_b32 {sW}, v37
s_and_b32 {sS}, {sR}, 3
s_lshr_b32 {sB}, {sR}, 2
s_lshl_b32 {sBH}, {sB}, 3
s_add_u32 {sBH}, {sBH}, {sHKV}
s_and_b32 {sJF}, s2, 31
""")
    a(f"""
v_lshrrev_b32 v38, 5, v1
v_and_b32 v39, 31, v1
s_lshl_b32 s67, {sW}, 1
v_add_u32 v40, s67, v38
v_mul_u32_u24 v41, 896, v40
v_lshl_add_u32 v41, v39, 5, v41
v_cmp_gt_u32 vcc, 28, v39
v_mov_b32 v42, 0x10000000
s_mov_b64 s[68:69], vcc
v_cndmask_b32 v42, v42, v41, vcc
""")
    a(f"""
v_xor_b32 v43, v39, v38
v_lshlrev_b32 v43, 4, v43
v_lshl_or_b32 v43, v38, 9, v43
""")
    for i in range(8):
        lit=32*i+(i>>2)*4096
        a(f"v_xor_b32 v{2+i}, {lit}, v43" if lit else "v_mov_b32 v2, v43")
    a(f"""
s_mul_i32 {sRING}, {sW}, {RING}
s_lshl_b32 s67, {sS}, 2
s_add_u32 s67, s67, {sW}
s_lshl_b32 {sKoff}, s67, 17
s_mov_b32 {sVoff}, {sKoff}
s_lshr_b32 s68, {sBH}, 11
s_lshl_b32 s67, {sBH}, 21
s_mov_b32 {sMASK}, {MASK}
s_waitcnt lgkmcnt(0)
s_load_dword {sE}, s[24:25], {WS_EPOCH}
s_mov_b32 s52, s4
s_and_b32 s53, s5, 0xffff
s_mov_b32 s54, 7168
s_mov_b32 s55, 0x20000
buffer_load_dwordx4 v[64:67], v42, {X}, 0 offen
buffer_load_dwordx4 v[68:71], v42, {X}, 0 offen offset:16
s_add_u32 s28, s6, s67
s_addc_u32 s29, s7, 0
s_and_b32 s29, s29, 0xffff
s_mov_b32 s30, 0x200000
s_mov_b32 s31, 0x20000
s_add_u32 s32, s8, s67
s_addc_u32 s33, s9, 0
s_and_b32 s33, s33, 0xffff
s_mov_b32 s34, 0x200000
s_mov_b32 s35, 0x20000
s_mov_b32 s36, s24
s_and_b32 s37, s25, 0xffff
s_mov_b32 s38, {WS_SIZE}
s_mov_b32 s39, 0x20000
""")
    a(f"""
s_mov_b32 s96, 0
s_cmp_lt_u32 {sR}, 16
s_cbranch_scc1 L_role_q_issue
s_sub_u32 s68, {sR}, 16
s_lshl_b32 s68, s68, 3
s_add_u32 s68, s68, {sHKV}
s_cmp_lt_u32 s68, 112
s_cbranch_scc0 L_role_none
s_mov_b32 s67, 2
s_cmp_eq_u32 {sW}, 0
s_cbranch_scc0 L_issue_done
""")
    def kloc(dst, stride_sreg):
        a(f"""
v_lshrrev_b32 v44, 1, v1
v_and_b32 v45, 3, v44
v_bfe_u32 v46, v44, 2, 2
v_lshl_add_u32 v45, v46, 3, v45
v_lshrrev_b32 v46, 4, v44
v_lshl_add_u32 v45, v46, 2, v45
v_mul_lo_u32 v45, v45, {stride_sreg}
v_and_b32 v46, 1, v1
v_lshl_add_u32 {dst}, v46, 4, v45
""")
    S1=RING*1+2*SLOT; S2=RING*2+2*SLOT
    a(f"""
s_mov_b32 s40, s16
s_and_b32 s41, s17, 0xffff
s_mov_b32 s42, {448*3584}
s_mov_b32 s43, 0x20000
s_mov_b32 s44, s18
s_and_b32 s45, s19, 0xffff
s_mov_b32 s46, {448*3584}
s_mov_b32 s47, 0x20000
s_mov_b32 s48, s20
s_and_b32 s49, s21, 0xffff
s_mov_b32 s50, {1792*896}
s_mov_b32 s51, 0x20000
s_mov_b32 s69, 3584
s_mov_b32 s96, 2
""")
    kloc("v47","s69")
    a(f"s_lshl_b32 s69, s68, 5")
    for i in range(14):
        a(f"s_mov_b32 m0, {L_S0+i*1024}")
        a(f"s_add_u32 s99, s69, {i*32*3584}" if i else "s_mov_b32 s99, s69")
        a(f"buffer_load_dwordx4 v47, {WA}, s99 offen {cfg.wpol} lds")
    for i in range(14):
        a(f"s_mov_b32 m0, {S1+i*1024}")
        a(f"s_add_u32 s99, s69, {i*32*3584}" if i else "s_mov_b32 s99, s69")
        a(f"buffer_load_dwordx4 v47, {WB}, s99 offen {cfg.wpol} lds")
    a(f"""
s_mul_i32 s69, s68, 14336
v_lshlrev_b32 v48, 4, v1
""")
    for i in range(14):
        if i%4==0:
            a(f"s_mov_b32 m0, {S2+i*1024}")
            a(f"s_add_u32 s99, s69, {i*1024}")
        a(f"buffer_load_dwordx4 v48, {WC}, s99 offen offset:{(i%4)*1024} {cfg.wpol} lds")
    a("s_branch L_issue_done")
    a(f"""
L_role_q_issue:
s_mov_b32 s67, 1
s_cmp_lt_u32 {sW}, 2
s_cbranch_scc0 L_issue_done
s_mov_b32 s40, s12
s_and_b32 s41, s13, 0xffff
s_mov_b32 s42, {448*8192}
s_mov_b32 s43, 0x20000
s_mov_b32 s69, 8192
s_mov_b32 s96, 1
""")
    kloc("v47","s69")
    a(f"""
s_lshl_b32 s68, {sHKV}, 10
s_lshl_b32 s69, {sR}, 6
s_add_u32 s68, s68, s69
s_lshl_b32 s69, {sW}, 5
s_add_u32 s69, s68, s69
s_mul_i32 s98, {sW}, {S1-L_S0}
s_add_u32 s98, s98, {L_S0}
""")
    for i in range(14):
        a(f"s_add_u32 m0, s98, {i*1024}")
        a(f"s_add_u32 s99, s69, {i*32*8192}" if i else "s_mov_b32 s99, s69")
        a(f"buffer_load_dwordx4 v47, {WA}, s99 offen {cfg.wpol} lds")
    a(f"""
s_branch L_issue_done
L_role_none:
s_mov_b32 s67, 0
L_issue_done:
""")
    seq=[]
    for q in range(4):
        for t in range(4): seq.append(("K",4*q+t))
        seq.append(("W",q))
    for t in range(16): seq.append(("V",t))
    NT=len(seq)
    def tsize(n): return 7 if seq[n][0]=="W" else 8
    def issue(n):
        kind,t=seq[n]; slot=n&3
        if kind in "KV":
            srd=K if kind=="K" else V
            so=sKoff if kind=="K" else sVoff
            vb=2 if kind=="K" else 10
            for i in range(8):
                if i%4==0:
                    a(f"s_add_u32 m0, {sRING}, {slot*SLOT+i*1024}")
                    a("s_nop 0")
                a(f"buffer_load_dwordx4 v{vb+i}, {srd}, {so} offen offset:{(i%4)*1024} {cfg.kpol} lds")
            a(f"s_add_u32 {so}, {so}, {SLOT}")
        else:
            for i in range(7):
                a(f"s_add_u32 m0, {sRING}, {slot*SLOT+i*1024}")
                a("s_nop 0")
                a(f"buffer_load_dwordx4 v{18+i}, {WO}, {sWoff} offen {cfg.wpol} lds")
            a(f"s_add_u32 {sWoff}, {sWoff}, {32*896}")
    issue(0); issue(1)
    extra=[w for w in range(4) if cfg.npre[w]>2]
    stamp_at(1)
    a("""
s_cmp_eq_u32 s96, 0
s_cbranch_scc1 L_lnw0
s_cmp_eq_u32 s96, 1
s_cbranch_scc1 L_lnw1
s_waitcnt vmcnt(58)
s_branch L_lnw
L_lnw1:
s_waitcnt vmcnt(30)
s_branch L_lnw
L_lnw0:
s_waitcnt vmcnt(16)
L_lnw:
""")
    a(f"s_mov_b64 exec, -1")
    for i in range(8):
        a(f"v_lshlrev_b32 v{72+2*i}, 16, v{64+i}")
        a(f"v_and_b32 v{73+2*i}, 0xffff0000, v{64+i}")
    a("v_add_f32 v44, v72, v73")
    a("v_add_f32 v45, v74, v75")
    for i in range(2,8):
        a(f"v_add_f32 v{44+(i&1)}, v{44+(i&1)}, v{72+2*i}")
        a(f"v_add_f32 v{44+(i&1)}, v{44+(i&1)}, v{73+2*i}")
    a("v_add_f32 v44, v44, v45")
    def red32(r,tmp,op="v_add_f32"):
        for sh in (8,4,2,1):
            a("s_nop 1")
            a(f"{op}_dpp v{r}, v{r}, v{r} row_ror:{sh} row_mask:0xf bank_mask:0xf")
        a(f"v_mov_b32 v{tmp}, v{r}")
        a("s_nop 1")
        a(f"v_permlane16_swap_b32 v{r}, v{tmp}")
        a("s_nop 1")
        a(f"{op} v{r}, v{r}, v{tmp}")
    red32(44,45)
    a(f"v_mul_f32 v44, {hex(f2u(1.0/448))}, v44")
    a("v_mov_b32 v46, 0")
    a("v_mov_b32 v47, 0")
    a("v_cmp_gt_u32 vcc, 28, v39")
    a("s_and_saveexec_b64 s[68:69], vcc")
    for i in range(16):
        a(f"v_sub_f32 v{88+(i&3)}, v{72+i}, v44")
        a(f"v_fmac_f32 v{46+(i&1)}, v{88+(i&3)}, v{88+(i&3)}")
    a("s_mov_b64 exec, -1")
    a("v_add_f32 v46, v46, v47")
    red32(46,47)
    a(f"""
v_mul_f32 v46, {hex(f2u(1.0/448))}, v46
v_cvt_pk_bf16_f32 v44, v44, v46
v_and_b32 v46, 0xffff0000, v44
v_lshlrev_b32 v44, 16, v44
v_add_f32 v46, {hex(f2u(1e-5))}, v46
v_cvt_pk_bf16_f32 v46, v46, v46
v_and_b32 v46, 0xffff0000, v46
v_sqrt_f32 v46, v46
s_nop 0
v_cvt_pk_bf16_f32 v46, v46, v46
v_and_b32 v46, 0xffff0000, v46
v_rcp_f32 v46, v46
""")
    for i in range(8):
        a(f"v_sub_f32 v{72+2*i}, v{72+2*i}, v44")
        a(f"v_sub_f32 v{73+2*i}, v{73+2*i}, v44")
        a(f"v_cvt_pk_bf16_f32 v{64+i}, v{72+2*i}, v{73+2*i}")
    for i in range(8):
        a(f"v_lshlrev_b32 v{72+2*i}, 16, v{64+i}")
        a(f"v_and_b32 v{73+2*i}, 0xffff0000, v{64+i}")
        a(f"v_mul_f32 v{72+2*i}, v{72+2*i}, v46")
        a(f"v_mul_f32 v{73+2*i}, v{73+2*i}, v46")
        a(f"v_cvt_pk_bf16_f32 v{64+i}, v{72+2*i}, v{73+2*i}")
    a(f"""
v_add_u32 v41, {L_XN}, v41
v_cmp_gt_u32 vcc, 28, v39
s_and_saveexec_b64 s[68:69], vcc
ds_write_b128 v41, v[64:67]
ds_write_b128 v41, v[68:71] offset:16
s_mov_b64 exec, -1
""")
    a(f"""
v_lshlrev_b32 v44, 1, v38
v_xor_b32 v44, v39, v44
v_lshlrev_b32 v44, 4, v44
v_lshl_or_b32 v44, v38, 9, v44
""")
    for i in range(8):
        lit=64*(i&3)+(i>>2)*4096
        a(f"v_xor_b32 v{10+i}, {lit}, v44" if lit else "v_mov_b32 v10, v44")
    a("s_waitcnt lgkmcnt(0)")
    a("s_barrier")
    stamp_at(2)
    a(f"""
s_add_u32 {sT}, {sE}, 1
s_and_b32 {sT}, {sT}, 0x3ff
v_mov_b32 v63, {sT}
""")
    a(f"""
v_and_b32 v37, 15, v1
v_lshrrev_b32 v38, 4, v1
""")
    a(f"""
s_cmp_eq_u32 s67, 1
s_cbranch_scc1 L_role_q
s_cmp_eq_u32 s67, 2
s_cbranch_scc0 L_role_end
s_cmp_eq_u32 {sW}, 0
s_cbranch_scc0 L_role_end
""")
    def xn_reads():
        a(f"""
v_and_b32 v44, 7, v1
v_mul_u32_u24 v44, 896, v44
v_lshl_add_u32 v44, v38, 4, v44
v_add_u32 v44, {L_XN}, v44
""")
        for j in range(14):
            a(f"ds_read_b128 v[{128+4*j}:{131+4*j}], v44 offset:{j*64}")
    def proj(base_reg, dst):
        for half in range(2):
            js=range(half*7,half*7+7)
            for j in js:
                jj=j-half*7
                a(f"ds_read_b64_tr_b16 v[{64+4*jj}:{65+4*jj}], {base_reg} offset:{j*1024}")
                a(f"ds_read_b64_tr_b16 v[{66+4*jj}:{67+4*jj}], {base_reg} offset:{j*1024+512}")
            a("s_waitcnt lgkmcnt(0)")
            for j in js:
                jj=j-half*7
                c = "0" if j==0 else f"v[{dst}:{dst+3}]"
                a(f"v_mfma_f32_16x16x32_bf16 v[{dst}:{dst+3}], v[{64+4*jj}:{67+4*jj}], v[{128+4*j}:{131+4*j}], {c}")
            a("s_nop 7") if half==0 else None
    xn_reads()
    a(f"""
v_lshlrev_b32 v45, 3, v1
v_add_u32 v46, {L_S0}, v45
v_add_u32 v47, {S1}, v45
s_waitcnt vmcnt(44)
""")
    proj("v46",48)
    a("s_waitcnt vmcnt(30)")
    proj("v47",52)
    a(f"""
s_nop 7
v_cvt_pk_bf16_f32 v48, v48, v49
v_cvt_pk_bf16_f32 v49, v50, v51
v_cvt_pk_bf16_f32 v52, v52, v53
v_cvt_pk_bf16_f32 v53, v54, v55
""")
    a(f"""
v_lshlrev_b32 v56, 16, v48
v_and_b32 v57, 0xffff0000, v48
v_lshlrev_b32 v58, 16, v49
v_and_b32 v59, 0xffff0000, v49
""")
    def silu(regs,tmp):
        for k,r in enumerate(regs): a(f"v_mul_f32 v{tmp+k}, {hex(f2u(-math.log2(math.e)))}, v{r}")
        for k,r in enumerate(regs): a(f"v_exp_f32 v{tmp+k}, v{tmp+k}")
        a("s_nop 0")
        for k,r in enumerate(regs): a(f"v_add_f32 v{tmp+k}, 1.0, v{tmp+k}")
        for k,r in enumerate(regs): a(f"v_rcp_f32 v{tmp+k}, v{tmp+k}")
        a("s_nop 0")
        for k,r in enumerate(regs): a(f"v_mul_f32 v{r}, v{r}, v{tmp+k}")
    silu([56,57,58,59],64)
    a(f"""
v_cvt_pk_bf16_f32 v48, v56, v57
v_cvt_pk_bf16_f32 v49, v58, v59
v_lshlrev_b32 v56, 16, v48
v_and_b32 v57, 0xffff0000, v48
v_lshlrev_b32 v58, 16, v49
v_and_b32 v59, 0xffff0000, v49
v_lshlrev_b32 v64, 16, v52
v_and_b32 v65, 0xffff0000, v52
v_lshlrev_b32 v66, 16, v53
v_and_b32 v67, 0xffff0000, v53
v_mul_f32 v56, v56, v64
v_mul_f32 v57, v57, v65
v_mul_f32 v58, v58, v66
v_mul_f32 v59, v59, v67
v_cvt_pk_bf16_f32 v60, v56, v57
v_cvt_pk_bf16_f32 v61, v58, v59
v_lshrrev_b32 v45, 2, v1
v_mul_u32_u24 v45, 896, v45
v_and_b32 v46, 3, v1
v_lshl_add_u32 v45, v46, 3, v45
v_add_u32 v45, {S2}, v45
v_mul_u32_u24 v46, 1792, v37
v_lshl_add_u32 v46, v38, 4, v46
s_sub_u32 s68, {sR}, 16
s_lshl_b32 s68, s68, 3
s_add_u32 s68, s68, {sHKV}
s_mul_i32 s68, s68, 14336
s_add_u32 s68, s68, {WS_Y}
s_waitcnt vmcnt(16)
v_cmp_gt_u32 vcc, 8, v37
s_mov_b64 s[98:99], vcc
""")
    for grp in range(2):
        for t in range(14):
            a(f"ds_read_b64_tr_b16 v[{64+2*t}:{65+2*t}], v45 offset:{(grp*14+t)*32}")
        a("s_waitcnt lgkmcnt(0)")
        for t in range(14):
            a(f"v_mfma_f32_16x16x16_bf16 v[{128+4*t}:{131+4*t}], v[{64+2*t}:{65+2*t}], v[60:61], 0")
        a("s_nop 7")
        for t in range(14):
            for k in range(4):
                a(f"v_and_or_b32 v{128+4*t+k}, v{128+4*t+k}, {sMASK}, v63")
        a("s_mov_b64 exec, s[98:99]")
        for t in range(14):
            a(f"buffer_store_dwordx4 v[{128+4*t}:{131+4*t}], v46, {WS}, s68 offen offset:{(grp*14+t)*64} sc1")
        a("s_mov_b64 exec, -1")
        if grp==0: a("s_nop 1")
    a("s_branch L_role_end")
    a(f"""
L_role_q:
s_cmp_lt_u32 {sW}, 2
s_cbranch_scc0 L_role_end
""")
    xn_reads()
    a(f"""
v_lshlrev_b32 v45, 3, v1
v_add_u32 v46, s98, v45
s_waitcnt vmcnt(16)
""")
    proj("v46",48)
    a(f"""
s_nop 7
v_cvt_pk_bf16_f32 v48, v48, v49
v_cvt_pk_bf16_f32 v49, v50, v51
v_lshlrev_b32 v52, 16, v48
v_and_b32 v53, 0xffff0000, v48
v_lshlrev_b32 v54, 16, v49
v_and_b32 v55, 0xffff0000, v49
v_or_b32 v52, v52, v63
v_or_b32 v53, v53, v63
v_or_b32 v54, v54, v63
v_or_b32 v55, v55, v63
v_lshlrev_b32 v46, 11, v37
v_lshl_add_u32 v46, v38, 4, v46
s_lshl_b32 s68, {sHKV}, 14
s_lshl_b32 s69, {sR}, 7
s_add_u32 s68, s68, s69
s_lshl_b32 s69, {sW}, 6
s_add_u32 s68, s68, s69
s_add_u32 s68, s68, {WS_Q}
v_cmp_gt_u32 vcc, 8, v37
s_and_saveexec_b64 s[98:99], vcc
buffer_store_dwordx4 v[52:55], v46, {WS}, s68 offen sc1
s_mov_b64 exec, -1
L_role_end:
""")
    stamp_at(3)
    def tagcheck(regs, acc):
        regs=list(regs)
        a(f"v_xor_b32 v{acc}, v{regs[0]}, v63")
        rest=regs[1:]
        i=0
        while i<len(rest):
            a(f"v_xor_b32 v{acc+1}, v{rest[i]}, v63")
            if i+1<len(rest):
                a(f"v_xor_b32 v{acc+2}, v{rest[i+1]}, v63")
                a(f"v_or3_b32 v{acc}, v{acc}, v{acc+1}, v{acc+2}")
                i+=2
            else:
                a(f"v_or_b32 v{acc}, v{acc}, v{acc+1}")
                i+=1
        a(f"v_and_b32 v{acc}, 0x3ff, v{acc}")
        a(f"v_cmp_eq_u32 vcc, 0, v{acc}")
    def poll(loads, regs, acc, name):
        lp=a.label(name); ok=a.label(name+"ok")
        a(f"s_mov_b32 s69, {cfg.spin}")
        a(f"{lp}:")
        loads()
        a("s_waitcnt vmcnt(0)")
        tagcheck(regs,acc)
        a("s_nop 1")
        a(f"""
s_cmp_eq_u64 vcc, -1
s_cbranch_scc1 {ok}
s_sub_u32 s69, s69, 1
s_cmp_eq_u32 s69, 0
s_cbranch_scc1 {ok}
""")
        if cfg.sleep: a(f"s_sleep {cfg.sleep}")
        a(f"s_branch {lp}")
        a(f"{ok}:")
    a(f"""
v_and_b32 v44, 3, v37
v_xor_b32 v44, v44, v38
v_lshlrev_b32 v44, 4, v44
v_lshl_or_b32 v44, v37, 9, v44
v_add_u32 v44, {sRING}, v44
v_lshrrev_b32 v45, 2, v37
v_lshlrev_b32 v45, 6, v45
""")
    for jj in range(4):
        a(f"v_xor_b32 v46, {64*jj}, v45" if jj else "v_mov_b32 v46, v45")
        a(f"v_add_u32 v{25+jj}, v44, v46")
    a(f"""
v_lshrrev_b32 v44, 2, v1
v_and_b32 v45, 7, v44
v_lshlrev_b32 v45, 5, v45
v_lshlrev_b32 v44, 9, v44
v_and_b32 v46, 3, v1
v_lshl_add_u32 v44, v46, 3, v44
v_add_u32 v44, {sRING}, v44
""")
    for t7 in range(8):
        a(f"v_xor_b32 v46, {32*t7}, v45" if t7 else "v_mov_b32 v46, v45")
        a(f"v_add_u32 v{29+t7}, v44, v46")
    for i in range(7):
        a(f"""
v_add_u32 v44, {64*i}, v1
v_mul_u32_u24 v45, 4682, v44
v_lshrrev_b32 v45, 16, v45
v_mul_u32_u24 v46, 14, v45
v_sub_u32 v44, v44, v46
v_mul_u32_u24 v45, 896, v45
v_lshl_add_u32 v{18+i}, v44, 4, v45
""")
    a(f"""
v_bfe_u32 v44, v1, 2, 2
v_lshl_add_u32 v44, v38, 3, v44
v_mul_u32_u24 v44, 224, v44
v_and_b32 v45, 3, v1
v_lshl_add_u32 v44, v45, 3, v44
v_add_u32 v40, {sRING}, v44
s_mov_b32 s56, s14
s_and_b32 s57, s15, 0xffff
s_mov_b32 s58, {4096*896}
s_mov_b32 s59, 0x20000
s_lshl_b32 s68, {sHKV}, 9
s_lshl_b32 s69, {sS}, 7
s_add_u32 s68, s68, s69
s_mul_i32 {sWoff}, s68, 896
s_mul_i32 s69, {sW}, 224
s_add_u32 {sWoff}, {sWoff}, s69
""")
    a(f"""
s_cmp_eq_u32 {sW}, 3
s_cbranch_scc0 L_q_wait
s_lshl_b32 s68, {sHKV}, 14
s_lshl_b32 s98, {sB}, 11
s_add_u32 s68, s68, s98
s_add_u32 s68, s68, {WS_Q}
v_lshlrev_b32 v44, 5, v1
""")
    def ql():
        a(f"buffer_load_dwordx4 v[64:67], v44, {WS}, s68 offen sc1")
        a(f"buffer_load_dwordx4 v[68:71], v44, {WS}, s68 offen offset:16 sc1")
    poll(ql, range(64,72), 45, "qp")
    a(f"""
s_mov_b32 s98, 0x07060302
v_perm_b32 v72, v65, v64, s98
v_perm_b32 v73, v67, v66, s98
v_perm_b32 v74, v69, v68, s98
v_perm_b32 v75, v71, v70, s98
v_lshlrev_b32 v44, 4, v1
v_add_u32 v44, {L_QL}, v44
ds_write_b128 v44, v[72:75]
L_q_wait:
""")
    a("""
s_waitcnt lgkmcnt(0)
s_barrier
""")
    stamp_at(4)
    issue(2); issue(3)
    a(f"""
v_and_b32 v44, 1, v1
v_lshlrev_b32 v44, 9, v44
v_lshl_add_u32 v44, v38, 4, v44
v_add_u32 v44, {L_QL}, v44
""")
    for j in range(8):
        a(f"ds_read_b128 v[{96+4*j}:{99+4*j}], v44 offset:{j*64}")
    a("v_mov_b32 v60, 0xff800000")
    for n in range(NT):
        kind,t=seq[n]; slot=n&3
        after=sum(tsize(m) for m in range(n+1,min(n+4,NT)))
        a(f"s_waitcnt vmcnt({after})")
        if kind=="K":
            for j in range(8):
                a(f"ds_read_b128 v[{64+4*j}:{67+4*j}], v{25+(j&3)} offset:{slot*SLOT+256*(j>>2)}")
        elif kind=="V":
            for tt in range(16):
                a(f"ds_read_b64_tr_b16 v[{64+2*tt}:{65+2*tt}], v{29+(tt&7)} offset:{slot*SLOT+256*(tt>>3)}")
        else:
            for ct in range(7):
                for h in range(2):
                    r=64+(ct*4+t)*4+2*h
                    a(f"ds_read_b64_tr_b16 a[{r}:{r+1}], v40 offset:{slot*SLOT+h*896+ct*32}")
        a("s_waitcnt lgkmcnt(0)")
        if n+4<NT: issue(n+4)
        if kind=="K":
            d=44+4*(t&1)
            for j in range(8):
                c="0" if j==0 else f"v[{d}:{d+3}]"
                a(f"v_mfma_f32_16x16x32_bf16 v[{d}:{d+3}], v[{64+4*j}:{67+4*j}], v[{96+4*j}:{99+4*j}], {c}")
            a("s_nop 7")
            a(f"v_max3_f32 v60, v60, v{d}, v{d+1}")
            a(f"v_cvt_pk_bf16_f32 v{128+2*t}, v{d}, v{d+1}")
            a(f"v_max3_f32 v60, v60, v{d+2}, v{d+3}")
            a(f"v_cvt_pk_bf16_f32 v{129+2*t}, v{d+2}, v{d+3}")
        elif kind=="V":
            for tt in range(16):
                c="0" if t==0 else f"a[{4*tt}:{4*tt+3}]"
                a(f"v_mfma_f32_16x16x16_bf16 a[{4*tt}:{4*tt+3}], v[{64+2*tt}:{65+2*tt}], v[{128+2*t}:{129+2*t}], {c}")
        if kind=="W" and t==3:
            stamp_at(5)
            def xg(r,tmp,op):
                a(f"v_mov_b32 v{tmp}, v{r}")
                a("s_nop 1")
                a(f"v_permlane16_swap_b32 v{r}, v{tmp}")
                a("s_nop 1")
                a(f"{op} v{r}, v{r}, v{tmp}")
                a(f"v_mov_b32 v{tmp}, v{r}")
                a("s_nop 1")
                a(f"v_permlane32_swap_b32 v{r}, v{tmp}")
                a("s_nop 1")
                a(f"{op} v{r}, v{r}, v{tmp}")
            xg(60,61,"v_max_f32")
            a(f"""
v_cvt_pk_bf16_f32 v60, v60, v60
v_and_b32 v60, 0xffff0000, v60
s_mov_b32 s98, {hex(f2u(CEXP))}
v_mul_f32 v61, s98, v60
v_sub_f32 v61, 0, v61
v_mov_b32 v62, 0
v_mov_b32 v59, 0
""")
            for i in range(0,32,2):
                for k in range(2):
                    r=128+i+k; tb=44+4*k
                    a(f"v_lshlrev_b32 v{tb}, 16, v{r}")
                    a(f"v_and_b32 v{tb+1}, 0xffff0000, v{r}")
                for k in range(2):
                    tb=44+4*k
                    a(f"v_fma_f32 v{tb}, v{tb}, s98, v61")
                    a(f"v_fma_f32 v{tb+1}, v{tb+1}, s98, v61")
                for k in range(2):
                    tb=44+4*k
                    a(f"v_exp_f32 v{tb}, v{tb}")
                    a(f"v_exp_f32 v{tb+1}, v{tb+1}")
                a("s_nop 0")
                for k in range(2):
                    r=128+i+k; tb=44+4*k
                    a(f"v_add_f32 v62, v62, v{tb}")
                    a(f"v_add_f32 v59, v59, v{tb+1}")
                    a(f"v_cvt_pk_bf16_f32 v{r}, v{tb}, v{tb+1}")
            a("v_add_f32 v62, v62, v59")
            xg(62,61,"v_add_f32")
            stamp_at(6)
    stamp_at(7)
    a(f"""
s_mov_b32 s60, s22
s_and_b32 s61, s23, 0xffff
s_mov_b32 s62, 7168
s_mov_b32 s63, 0x20000
v_lshrrev_b32 v44, 2, v1
v_and_b32 v45, 3, v1
""")
    a(f"""
v_lshlrev_b32 v46, 10, v37
v_lshl_add_u32 v46, v38, 4, v46
s_lshl_b32 s68, {sW}, 11
s_add_u32 s68, s68, {L_OC}
v_add_u32 v46, s68, v46
v_lshlrev_b32 v47, 5, v37
s_lshl_b32 s68, {sW}, 3
s_add_u32 s68, s68, {L_ML}
v_add_u32 v47, s68, v47
v_mov_b32 v61, v62
s_mov_b32 s98, 0x00030003
s_mov_b32 s99, 0x00030003
s_mov_b64 exec, s[98:99]
""")
    for tt in range(16):
        a(f"ds_write_b128 v46, a[{4*tt}:{4*tt+3}] offset:{tt*64}")
    a(f"""
s_mov_b64 exec, 3
ds_write_b64 v47, v[60:61]
s_mov_b64 exec, -1
s_waitcnt lgkmcnt(0)
s_barrier
""")
    stamp_at(8)
    a(f"""
s_lshr_b32 s68, {sW}, 1
s_lshl_b32 s69, s68, 5
s_add_u32 s69, s69, {L_ML}
v_mov_b32 v46, s69
ds_read_b128 v[64:67], v46
ds_read_b128 v[68:71], v46 offset:16
s_lshl_b32 s69, {sW}, 9
s_add_u32 s69, s69, {L_OC}
v_and_b32 v47, 31, v1
v_lshlrev_b32 v48, 4, v47
v_add_u32 v46, s69, v48
ds_read_b128 v[72:75], v46
ds_read_b128 v[76:79], v46 offset:2048
ds_read_b128 v[80:83], v46 offset:4096
ds_read_b128 v[84:87], v46 offset:6144
s_mov_b32 s98, {hex(f2u(CEXP))}
s_waitcnt lgkmcnt(4)
v_max3_f32 v50, v64, v66, v68
v_max_f32 v50, v50, v70
v_sub_f32 v52, v64, v50
v_sub_f32 v53, v66, v50
v_sub_f32 v54, v68, v50
v_sub_f32 v55, v70, v50
v_mul_f32 v52, s98, v52
v_mul_f32 v53, s98, v53
v_mul_f32 v54, s98, v54
v_mul_f32 v55, s98, v55
v_exp_f32 v52, v52
v_exp_f32 v53, v53
v_exp_f32 v54, v54
v_exp_f32 v55, v55
s_nop 0
v_mul_f32 v51, v52, v65
v_fmac_f32 v51, v53, v67
v_fmac_f32 v51, v54, v69
v_fmac_f32 v51, v55, v71
s_waitcnt lgkmcnt(0)
""")
    for k in range(4):
        a(f"v_mul_f32 v{56+k}, v52, v{72+k}")
    for k in range(4):
        a(f"v_fmac_f32 v{56+k}, v53, v{76+k}")
    for k in range(4):
        a(f"v_fmac_f32 v{56+k}, v54, v{80+k}")
    for k in range(4):
        a(f"v_fmac_f32 v{56+k}, v55, v{84+k}")
    a(f"""
v_cmp_eq_u32 vcc, 32, v1
s_lshl_b32 s68, {sBH}, 2
s_add_u32 s68, s68, {sW}
s_lshl_b32 s68, s68, 12
s_add_u32 s68, s68, {WS_O}
v_cndmask_b32 v56, v56, v50, vcc
v_cndmask_b32 v57, v57, v51, vcc
v_cndmask_b32 v58, v58, v50, vcc
v_cndmask_b32 v59, v59, v51, vcc
s_lshl_b32 s69, {sS}, 9
v_add_u32 v48, s69, v48
s_lshl_b32 s69, {sS}, 7
s_add_u32 s69, s69, 2048
v_mov_b32 v49, s69
v_cndmask_b32 v48, v48, v49, vcc
v_and_or_b32 v56, v56, {sMASK}, v63
v_and_or_b32 v57, v57, {sMASK}, v63
v_and_or_b32 v58, v58, {sMASK}, v63
v_and_or_b32 v59, v59, {sMASK}, v63
s_mov_b32 s98, -1
s_mov_b32 s99, 1
s_mov_b64 exec, s[98:99]
buffer_store_dwordx4 v[56:59], v48, {WS}, s68 offen sc1
s_mov_b64 exec, -1
""")
    a(f"""
s_cmp_eq_u32 {sW}, 0
s_cbranch_scc1 L_hop1
s_cmp_eq_u32 {sW}, 1
s_cbranch_scc0 L_b4
s_cmp_lt_u32 {sJF}, 28
s_cbranch_scc0 L_b4
v_mul_u32_u24 v46, 14336, v44
v_lshl_add_u32 v46, v45, 4, v46
s_mul_i32 s68, {sB}, 1792
s_lshl_b32 s98, {sJF}, 6
s_add_u32 s68, s68, s98
s_add_u32 s68, s68, {WS_Y}
""")
    def yl():
        for i in range(7):
            a(f"s_add_u32 s98, s68, {i*16*14336}")
            a(f"buffer_load_dwordx4 v[{64+4*i}:{67+4*i}], v46, {WS}, s98 offen sc1")
    poll(yl, range(64,92), 48, "yp")
    def red_q(base,n=4,tmp=52):
        for sh in (4,8):
            a("s_nop 1")
            for k in range(n):
                a(f"v_add_f32_dpp v{base+k}, v{base+k}, v{base+k} row_ror:{sh} row_mask:0xf bank_mask:0xf")
        for sw in ("16","32"):
            for k in range(n): a(f"v_mov_b32 v{tmp+k}, v{base+k}")
            a("s_nop 1")
            for k in range(n): a(f"v_permlane{sw}_swap_b32 v{base+k}, v{tmp+k}")
            a("s_nop 1")
            for k in range(n): a(f"v_add_f32 v{base+k}, v{base+k}, v{tmp+k}")
    for i in range(1,7):
        for k in range(4):
            a(f"v_add_f32 v{64+k}, v{64+k}, v{64+4*i+k}")
    red_q(64)
    a(f"""
v_cvt_pk_bf16_f32 v68, v64, v65
v_cvt_pk_bf16_f32 v69, v66, v67
v_lshlrev_b32 v56, 16, v68
v_and_b32 v57, 0xffff0000, v68
v_lshlrev_b32 v58, 16, v69
v_and_b32 v59, 0xffff0000, v69
""")
    silu([56,57,58,59],64)
    a(f"""
v_cvt_pk_bf16_f32 v68, v56, v57
v_cvt_pk_bf16_f32 v69, v58, v59
v_lshlrev_b32 v46, 3, v45
v_add_u32 v46, {L_GL}, v46
s_mov_b64 exec, 15
ds_write_b64 v46, v[68:69]
s_mov_b64 exec, -1
s_branch L_b4
L_hop1:
s_lshl_b32 s68, {sBH}, 2
s_add_u32 s68, s68, {sS}
s_lshl_b32 s68, s68, 12
s_add_u32 s68, s68, {WS_O}
v_lshrrev_b32 v46, 5, v1
v_lshlrev_b32 v47, 9, v46
v_and_b32 v48, 31, v1
v_lshl_add_u32 v47, v48, 4, v47
v_lshlrev_b32 v46, 7, v46
v_add_u32 v46, 2048, v46
s_mul_i32 s98, {sB}, 896
s_lshl_b32 s99, {sJF}, 5
s_add_u32 s98, s98, s99
v_lshlrev_b32 v49, 3, v45
buffer_load_dwordx2 v[90:91], v49, {X}, s98 offen
""")
    def ol():
        a(f"buffer_load_dwordx4 v[64:67], v47, {WS}, s68 offen sc1")
        a(f"buffer_load_dwordx4 v[68:71], v47, {WS}, s68 offen offset:1024 sc1")
        a(f"buffer_load_dwordx4 v[72:75], v46, {WS}, s68 offen sc1")
        a(f"buffer_load_dwordx4 v[76:79], v46, {WS}, s68 offen offset:256 sc1")
    poll(ol, range(64,80), 50, "op")
    a(f"""
v_and_b32 v72, {sMASK}, v72
v_and_b32 v76, {sMASK}, v76
s_mov_b32 s98, {hex(f2u(CEXP))}
v_max_f32 v50, v72, v76
v_mov_b32 v51, v50
s_nop 1
v_permlane32_swap_b32 v50, v51
s_nop 1
v_max_f32 v50, v50, v51
v_sub_f32 v52, v72, v50
v_sub_f32 v53, v76, v50
v_mul_f32 v52, s98, v52
v_mul_f32 v53, s98, v53
v_exp_f32 v52, v52
v_exp_f32 v53, v53
s_nop 0
v_mul_f32 v56, v52, v73
v_fmac_f32 v56, v53, v77
""")
    for k in range(4): a(f"v_mul_f32 v{57+k}, v52, v{64+k}")
    for k in range(4): a(f"v_fmac_f32 v{57+k}, v53, v{68+k}")
    for k in range(5): a(f"v_mov_b32 v{80+k}, v{56+k}")
    a("s_nop 1")
    for k in range(5): a(f"v_permlane32_swap_b32 v{56+k}, v{80+k}")
    a("s_nop 1")
    for k in range(5): a(f"v_add_f32 v{56+k}, v{56+k}, v{80+k}")
    a(f"""
v_rcp_f32 v56, v56
s_nop 0
v_mul_f32 v57, v57, v56
v_mul_f32 v58, v58, v56
v_mul_f32 v59, v59, v56
v_mul_f32 v60, v60, v56
v_cvt_pk_bf16_f32 v56, v57, v58
v_cvt_pk_bf16_f32 v57, v59, v60
v_lshlrev_b32 v48, 3, v48
v_add_u32 v48, {L_OB}, v48
s_mov_b32 s98, -1
s_mov_b32 s99, 0
s_mov_b64 exec, s[98:99]
ds_write_b64 v48, v[56:57]
s_mov_b64 exec, -1
L_b4:
s_waitcnt lgkmcnt(0)
s_barrier
""")
    stamp_at(9)
    a(f"""
v_lshlrev_b32 v46, 4, v38
v_add_u32 v46, {L_OB}, v46
""")
    for j in range(4):
        a(f"ds_read_b128 v[{64+4*j}:{67+4*j}], v46 offset:{j*64}")
    a(f"""
v_lshlrev_b32 v47, 4, v38
s_lshl_b32 s68, {sB}, 16
s_lshl_b32 s69, {sJF}, 11
s_add_u32 s68, s68, s69
s_mul_i32 s69, {sW}, 448
s_add_u32 s68, s68, s69
s_add_u32 s68, s68, {WS_S}
s_waitcnt lgkmcnt(0)
""")
    for j in range(4):
        for ct in range(7):
            r=64+(ct*4+j)*4
            c="0" if j==0 else f"v[{96+4*ct}:{99+4*ct}]"
            a(f"v_mfma_f32_16x16x32_bf16 v[{96+4*ct}:{99+4*ct}], a[{r}:{r+3}], v[{64+4*j}:{67+4*j}], {c}")
    a("s_nop 7")
    for ct in range(7):
        for k in range(4):
            a(f"v_and_or_b32 v{96+4*ct+k}, v{96+4*ct+k}, {sMASK}, v63")
    a(f"""
s_mov_b32 s98, 0x00010001
s_mov_b32 s99, 0x00010001
s_mov_b64 exec, s[98:99]
""")
    for ct in range(7):
        a(f"buffer_store_dwordx4 v[{96+4*ct}:{99+4*ct}], v47, {WS}, s68 offen offset:{ct*64} sc1")
    a("s_mov_b64 exec, -1")
    stamp_at(10)
    a(f"""
s_cmp_eq_u32 {sW}, 0
s_cbranch_scc0 L_end
s_cmp_lt_u32 {sJF}, 28
s_cbranch_scc0 L_end
v_lshlrev_b32 v46, 11, v44
v_lshl_add_u32 v46, v45, 4, v46
s_lshl_b32 s68, {sB}, 16
s_lshl_b32 s69, {sJF}, 6
s_add_u32 s68, s68, s69
s_add_u32 s68, s68, {WS_S}
s_add_u32 s67, s68, {16*2048}
v_lshlrev_b32 v47, 3, v45
v_add_u32 v47, {L_GL}, v47
ds_read_b64 v[92:93], v47
""")
    def sl():
        a(f"buffer_load_dwordx4 v[64:67], v46, {WS}, s68 offen sc1")
        a(f"buffer_load_dwordx4 v[68:71], v46, {WS}, s67 offen sc1")
    poll(sl, range(64,72), 48, "sp")
    for k in range(4): a(f"v_add_f32 v{64+k}, v{64+k}, v{68+k}")
    red_q(64)
    a(f"""
s_waitcnt lgkmcnt(0)
v_cvt_pk_bf16_f32 v68, v64, v65
v_cvt_pk_bf16_f32 v69, v66, v67
v_lshlrev_b32 v64, 16, v68
v_and_b32 v65, 0xffff0000, v68
v_lshlrev_b32 v66, 16, v69
v_and_b32 v67, 0xffff0000, v69
v_lshlrev_b32 v68, 16, v92
v_and_b32 v69, 0xffff0000, v92
v_lshlrev_b32 v70, 16, v93
v_and_b32 v71, 0xffff0000, v93
v_mul_f32 v64, v64, v68
v_mul_f32 v65, v65, v69
v_mul_f32 v66, v66, v70
v_mul_f32 v67, v67, v71
v_cvt_pk_bf16_f32 v68, v64, v65
v_cvt_pk_bf16_f32 v69, v66, v67
v_lshlrev_b32 v64, 16, v68
v_and_b32 v65, 0xffff0000, v68
v_lshlrev_b32 v66, 16, v69
v_and_b32 v67, 0xffff0000, v69
v_lshlrev_b32 v68, 16, v90
v_and_b32 v69, 0xffff0000, v90
v_lshlrev_b32 v70, 16, v91
v_and_b32 v71, 0xffff0000, v91
v_add_f32 v64, v64, v68
v_add_f32 v65, v65, v69
v_add_f32 v66, v66, v70
v_add_f32 v67, v67, v71
v_cvt_pk_bf16_f32 v68, v64, v65
v_cvt_pk_bf16_f32 v69, v66, v67
s_mul_i32 s98, {sB}, 896
s_lshl_b32 s99, {sJF}, 5
s_add_u32 s98, s98, s99
v_lshlrev_b32 v49, 3, v45
s_mov_b64 exec, 15
buffer_store_dwordx2 v[68:69], v49, {OUT}, s98 offen
s_mov_b64 exec, -1
s_cmp_eq_u32 s2, 0
s_cbranch_scc0 L_end
s_add_u32 s98, {sE}, 1
v_mov_b32 v44, s98
v_mov_b32 v45, 0
s_mov_b64 exec, 1
buffer_store_dword v44, v45, {WS}, 0 offen sc1
s_mov_b64 exec, -1
L_end:
""")
    if cfg.stamps:
        stamp_at(11)
        a("s_waitcnt lgkmcnt(0)")
        for i in range(12): a(f"v_mov_b32 v{64+i}, s{streg(i)}")
        a(f"""
s_lshl_b32 s68, s2, 2
s_add_u32 s68, s68, {sW}
s_lshl_b32 s68, s68, 6
s_add_u32 s68, s68, {WS_ST}
v_mov_b32 v44, 0
s_mov_b64 exec, 1
buffer_store_dwordx4 v[64:67], v44, {WS}, s68 offen
buffer_store_dwordx4 v[68:71], v44, {WS}, s68 offen offset:16
buffer_store_dwordx4 v[72:75], v44, {WS}, s68 offen offset:32
""")
    a("s_waitcnt vmcnt(0)")
    a("L_done:")
    a("s_endpgm")
    return a.text()

HEAD=open("cdna_kernels/"+NAME+".s.ref").read().split("; Override launch geometry")[0]
def wrap(body):
    return HEAD+f"""; Override launch geometry by editing the next line (default: block=256,
; grid=ceil(out_elems/256), lds=0). Harness parses it; keep it on one line.
; @launch grid=(256,1,1) block=(256,1,1) lds={LDS_SIZE}
.amdgcn_target "amdgcn-amd-amdhsa--gfx950"
.text
.globl {NAME}_kernel
.p2align 8
.type {NAME}_kernel,@function
{NAME}_kernel:
{body}.section .rodata,"a"
.p2align 6
.amdhsa_kernel {NAME}_kernel
  .amdhsa_next_free_vgpr 512
  .amdhsa_next_free_sgpr 102
  .amdhsa_accum_offset 256
  .amdhsa_group_segment_fixed_size 0
  .amdhsa_kernarg_size 96
  .amdhsa_user_sgpr_count 2
  .amdhsa_user_sgpr_kernarg_segment_ptr 1
  .amdhsa_system_sgpr_workgroup_id_x 1
.end_amdhsa_kernel
"""
if __name__=="__main__":
    out=sys.argv[1] if len(sys.argv)>1 else "cdna_kernels/"+NAME+".s"
    cfg=Cfg()
    for kv in sys.argv[2:]:
        k,v=kv.split("=")
        if k=="stamps": cfg.stamps=bool(int(v))
        elif k in("kpol","wpol"): setattr(cfg,k,v.replace("_"," "))
        else: setattr(cfg,k,int(v))
    open(out,"w").write(wrap(gen(cfg)))
```
